```python
import torch

def _softmax(x, axis=-1):
    return torch.softmax(x, dim=axis)
def _gelu(x):
    return torch.nn.functional.gelu(x, approximate="tanh")
def _silu(x):
    return torch.nn.functional.silu(x)
def _sigmoid(x):
    return torch.sigmoid(x)
def _layernorm(x, axis=-1, eps=1e-5):
    m = x.mean(dim=axis, keepdim=True)
    v = x.var(dim=axis, keepdim=True, unbiased=False)
    return (x - m) / torch.sqrt(v + eps)
def _scatter_add(tgt, idx, src, axis=0):
    return tgt.clone().index_add_(axis, idx, src)
def _segment_sum(src, seg, n):
    out = torch.zeros((n,) + src.shape[1:], dtype=src.dtype)
    return out.index_add_(0, seg, src)
def _pad(x, pw):
    flat = tuple(v for pair in reversed(pw) for v in pair)
    return torch.nn.functional.pad(x, flat)

kernel_name = 'standalone__modern_conv_block_replknet__vision'

def setup_inputs():

    _w = (lambda a: (lambda t: t.to(torch.bfloat16) if t.is_floating_point() else t)(torch.as_tensor(a)))
    H = W = 224
    C = 192
    K = 3
    return {
        "x": _w((lambda *s: torch.randn(*s, dtype=torch.bfloat16) * 0.05)(1, H, W, C)),
        "dw_large": _w((lambda *s: torch.randn(*s, dtype=torch.bfloat16) * 0.4)(K, K, C) * (1.0 / K)),
        "dw_small": _w((lambda *s: torch.randn(*s, dtype=torch.bfloat16) * 0.4)(5, 5, C) * 0.2),
        "w1": _w((lambda *s: torch.randn(*s, dtype=torch.bfloat16) * 0.4)(C, 4 * C) * (C ** -0.5)),
        "w2": _w((lambda *s: torch.randn(*s, dtype=torch.bfloat16) * 0.1)(4 * C, C) * ((4 * C) ** -0.5)),
    }

def reference(x, dw_large, dw_small, w1, w2):
    B, H, W, C = x.shape
    Kl = dw_large.shape[0]
    pl = (Kl - 1) // 2
    xpl = _pad(x, ((0,0),(pl,pl),(pl,pl),(0,0)))
    out = torch.zeros_like(x)
    for i in range(Kl):
        for j in range(Kl):
            out = out + xpl[:, i:i+H, j:j+W, :] * dw_large[i, j][None, None, None, :]
    Ks = dw_small.shape[0]
    ps = (Ks - 1) // 2
    xps = _pad(x, ((0,0),(ps,ps),(ps,ps),(0,0)))
    for i in range(Ks):
        for j in range(Ks):
            out = out + xps[:, i:i+H, j:j+W, :] * dw_small[i, j][None, None, None, :]
    h = _layernorm(out, axis=-1)
    h = _gelu(torch.einsum('bhwc,ce->bhwe', h, w1))
    h = torch.einsum('bhwe,ec->bhwc', h, w2)
    return x + h
```

```python
from mlp import *
import hazard, flow

NAME = "standalone__modern_conv_block_replknet__vision"
SRD_X, SRD_OUT, SRD_WS = 32, 36, 48
sW, sR0, sC0, sH13, sPa, sHb = 20, 21, 22, 23, 24, 25
XBYTES = 19267584

def header(grid=252):
    return f"""; @launch grid=({grid},1,1) block=(512,1,1) lds={LDS_BYTES}
.amdgcn_target "amdgcn-amd-amdhsa--gfx950"
.text
.globl {NAME}_kernel
.p2align 8
.type {NAME}_kernel,@function
{NAME}_kernel:
"""
def footer():
    return f"""
.section .rodata,"a"
.p2align 6
.amdhsa_kernel {NAME}_kernel
  .amdhsa_next_free_vgpr 256
  .amdhsa_next_free_sgpr 102
  .amdhsa_accum_offset 256
  .amdhsa_group_segment_fixed_size 0
  .amdhsa_kernarg_size 64
  .amdhsa_user_sgpr_count 2
  .amdhsa_user_sgpr_kernarg_segment_ptr 1
  .amdhsa_system_sgpr_workgroup_id_x 1
  .amdhsa_float_denorm_mode_32 3
  .amdhsa_float_denorm_mode_16_64 3
.end_amdhsa_kernel
"""

def srd(base, lo, nbytes):
    return [f"s_mov_b32 s{base}, s{lo}", f"s_hold", f"s_mov_b32 s{base+2}, {nbytes}", f"s_mov_b32 s{base+3}, 0x20000"][0:1] + \
           [f"s_mov_b32 s{base+1}, s{lo+1}", f"s_mov_b32 s{base+2}, {nbytes}", f"s_mov_b32 s{base+3}, 0x20000"]

def tile_decode():
    return [
        "s_and_b32 s26, s2, 7",
        "s_lshr_b32 s27, s2, 3",
        "s_lshl_b32 s28, s26, 5",
        "s_add_u32 s27, s27, s28",
        "s_max_u32 s26, s26, 4",
        "s_sub_u32 s27, s27, s26",
        "s_add_u32 s27, s27, 4",
        "s_mul_i32 s26, s27, 4682",
        "s_lshr_b32 s26, s26, 16",
        "s_mul_i32 s28, s26, 14",
        "s_sub_u32 s28, s27, s28",
        f"s_lshl_b32 s{sC0}, s28, 4",
        "s_mul_i32 s28, s26, 112",
        "s_add_u32 s29, s28, 116",
        "s_add_u32 s28, s28, 4",
        "s_mul_i32 s29, s29, 7282",
        "s_mul_i32 s28, s28, 7282",
        "s_lshr_b32 s29, s29, 16",
        "s_lshr_b32 s28, s28, 16",
        f"s_sub_u32 s{sR0}, s29, 13",
        f"s_cmp_eq_u32 s{sR0}, s28",
        f"s_cselect_b32 s{sH13}, 1, 0",
    ]

def p_addr_setup(lane="v9", t0="v10", t1="v11"):
    return [
        f"v_lshrrev_b32 {t0}, 4, {lane}",
        f"v_bfe_u32 {t1}, {lane}, 2, 2",
        f"v_lshl_add_u32 v{vW1A}, {t0}, 3, {t1}",
        f"v_lshlrev_b32 v{vW1A}, 6, v{vW1A}",
        f"v_xor_b32 {t1}, s{sHb}, {t0}",
        f"v_and_b32 {t1}, 1, {t1}",
        f"v_lshl_add_u32 v{vW1A}, {t1}, 5, v{vW1A}",
        f"v_and_b32 {t1}, 3, {lane}",
        f"v_lshl_add_u32 v{vW1A}, {t1}, 3, v{vW1A}",
        f"v_add_u32 v{vW1A}, {W1BASE}, v{vW1A}",
        f"v_and_b32 {t1}, 15, {lane}",
        f"v_lshlrev_b32 v{vGW}, 4, {t1}",
        f"v_and_b32 {t1}, 1, {t0}",
        f"v_lshl_add_u32 v{vGW}, {t1}, 3, v{vGW}",
        f"v_lshrrev_b32 {t0}, 1, {t0}",
        f"v_lshl_add_u32 v{vGLW}, {t0}, 8, v{vGW}",
        f"v_mov_b32 v{vGW}, v{vGLW}",
        f"s_lshl_b32 s26, s{sPa}, 11",
        f"s_lshl_b32 s27, s{sHb}, 10",
        "s_add_u32 s26, s26, s27",
        f"s_add_u32 s26, s26, {GBASE}",
        f"v_add_u32 v{vGW}, s26, v{vGW}",
        f"s_lshl_b32 s26, s{sHb}, 9",
        f"s_lshl_b32 s27, s{sPa}, 2",
        "s_add_u32 s26, s26, s27",
        f"s_add_u32 s26, s26, {GBASE+12288}",
        f"v_add_u32 v{vGLW}, s26, v{vGLW}",
        f"s_cmp_eq_u32 s{sPa}, 1",
        f"s_cselect_b64 s[{sPA}:{sPA+1}], -1, 0",
    ]

def q_dma_setup(lane="v9", t0="v10", t1="v11"):
    return [
        f"s_and_b32 s26, s{sW}, 3",
        f"v_lshrrev_b32 {t0}, 2, {lane}",
        f"v_mul_u32_u24 v{vD1}, 1536, {t0}",
        f"v_lshrrev_b32 {t0}, 5, {lane}",
        f"v_lshlrev_b32 {t0}, 1, {t0}",
        f"v_xor_b32 {t0}, {t0}, {lane}",
        f"v_and_b32 {t0}, 3, {t0}",
        f"v_lshl_add_u32 v{vD1}, {t0}, 4, v{vD1}",
        f"s_mul_i32 s{sD1}, s26, {3*16*1536}",
        f"s_mul_i32 s{sM1}, s26, 3072",
        f"v_lshrrev_b32 {t0}, 3, {lane}",
        f"v_mul_u32_u24 v{vD2}, 384, {t0}",
        f"v_bfe_u32 {t0}, {lane}, 4, 1",
        f"v_lshlrev_b32 {t0}, 2, {t0}",
        f"v_xor_b32 {t0}, {t0}, {lane}",
        f"s_and_b32 s27, s26, 1",
        f"s_lshl_b32 s27, s27, 1",
        f"v_xor_b32 {t0}, s27, {t0}",
        f"v_and_b32 {t0}, 7, {t0}",
        f"v_lshl_add_u32 v{vD2}, {t0}, 4, v{vD2}",
        f"s_mul_i32 s{sD2}, s26, {8*384}",
        f"s_lshl_b32 s{sM2}, s26, 10",
    ]

def q_addr_setup(lane="v9", t0="v10", t1="v11"):
    a = [
        f"v_bfe_u32 {t0}, {lane}, 2, 2",
        f"v_lshlrev_b32 v{vW2A}, 7, {t0}",
        f"v_lshrrev_b32 {t0}, 1, {t0}",
        f"v_lshl_add_u32 v{vW2A}, {t0}, 6, v{vW2A}",
        f"v_mov_b32 v{vW2L0}, v{vW2A}",
        f"v_lshrrev_b32 {t0}, 5, {lane}",
        f"v_lshl_add_u32 v{vW2A}, {t0}, 10, v{vW2A}",
        f"v_lshrrev_b32 {t1}, 4, {lane}",
        f"v_xor_b32 {t0}, {t0}, {t1}",
        f"v_and_b32 {t0}, 1, {t0}",
        f"v_lshl_add_u32 v{vW2A}, {t0}, 5, v{vW2A}",
        f"v_and_b32 {t0}, 1, {lane}",
        f"v_lshl_add_u32 v{vW2A}, {t0}, 4, v{vW2A}",
        f"v_bfe_u32 {t0}, {lane}, 1, 1",
        f"v_lshl_add_u32 v{vW2A}, {t0}, 3, v{vW2A}",
        f"s_lshl_b32 s26, s{sHb}, 6",
        f"v_xor_b32 v{vW2A}, s26, v{vW2A}",
        f"v_xor_b32 v{vW2B}, 64, v{vW2A}",
        f"s_lshl_b32 s26, s{sHb}, 12",
        f"s_add_u32 s27, s26, {W2BASE}",
        f"v_add_u32 v{vW2A}, s27, v{vW2A}",
        "s_add_u32 s27, s27, s26",
        f"v_add_u32 v{vW2B}, s27, v{vW2B}",
        f"v_lshl_add_u32 v{vW2L0}, {t1}, 10, v{vW2L0}",
        f"v_and_b32 {t0}, 1, {t1}",
        f"v_lshl_add_u32 v{vW2L0}, {t0}, 5, v{vW2L0}",
        f"v_and_b32 {t0}, 3, {lane}",
        f"v_lshl_add_u32 v{vW2L0}, {t0}, 3, v{vW2L0}",
        f"s_and_b32 s26, s{sW}, 3",
        "s_mul_i32 s26, s26, 96",
    ]
    for b, reg in ((2, vW2L2), (1, vW2L1), (0, vW2L0)):
        a += [f"s_add_u32 s27, s26, {32*b}",
              "s_and_b32 s28, s27, 127",
              "s_lshr_b32 s27, s27, 7",
              "s_lshl_b32 s27, s27, 12",
              f"s_add_u32 s27, s27, {W2BASE}",
              f"v_xor_b32 v{reg}, s28, v{vW2L0}",
              f"v_add_u32 v{reg}, s27, v{reg}"]
    a += [f"s_lshl_b32 s26, s{sPa}, 11",
          f"s_add_u32 s26, s26, {GBASE}",
          f"v_lshlrev_b32 {t0}, 4, {lane}",
          f"v_add_u32 v0, {GBASE+12288}, {t0}",
          f"v_and_b32 {t0}, 15, {lane}",
          f"v_lshlrev_b32 {t0}, 4, {t0}",
          f"v_bfe_u32 {t1}, {lane}, 4, 1",
          f"v_lshl_add_u32 {t0}, {t1}, 9, {t0}",
          f"v_lshrrev_b32 {t1}, 5, {lane}",
          f"v_lshl_add_u32 {t0}, {t1}, 8, {t0}",
          f"v_add_u32 v{vGR}, s26, {t0}"]
    return a

def dma_one(kind, chunk_rel, slot):
    out = []
    for i in range(3):
        if kind == 1:
            out += [f"s_add_u32 m0, s{sM1}, {W1S[slot] + i*1024}",
                    f"s_add_u32 s69, s{sD1}, {i*16*1536 + chunk_rel*64}",
                    f"buffer_load_dwordx4 v{vD1}, s[{SRD_W1}:{SRD_W1+3}], s69 offen lds"]
        else:
            out += [f"s_add_u32 m0, s{sM2}, {W2S[slot] + i*4096}",
                    f"s_add_u32 s69, s{sD2}, {i*128 + chunk_rel*12288}",
                    f"buffer_load_dwordx4 v{vD2}, s[{SRD_W2}:{SRD_W2+3}], s69 offen lds"]
    return out

def p_main(opt, tag="P"):
    st, step, pre = p_plan(opt)
    out = pre(st)
    out += [f"s_mov_b32 s{sCNT}, 0", ".p2align 3", f"L_{tag}_loop:"]
    for c3 in range(3):
        if c3 == 2:
            out += [f"s_cmp_eq_u32 s{sCNT}, 7", f"s_cbranch_scc1 L_{tag}_last"]
        out += step(c3, state=st, trace=True)[0]
    out += [f"s_add_u32 s{sCNT}, s{sCNT}, 1", f"s_branch L_{tag}_loop", ".p2align 3", f"L_{tag}_last:"]
    out += step(2, last=True, state=st)[0]
    b = [step(c, state=st)[0] for c in range(3)]
    hazard.fix(hazard.fix(b[0])[:24], history=hazard.fix(b[2]), insert=False)
    hazard.fix(hazard.fix(step(2, last=True, state=st)[0])[:24], history=hazard.fix(b[1]), insert=False)
    return out

def q_main(opt, step0_extra, tag="Q"):
    has_l = opt["has_l"]
    out = [f"s_setprio {opt['prio_q']}"]
    out += q_dma(0, 2) + step0_extra + q_w2_reads(0, has_l) + ["s_waitcnt vmcnt(6) lgkmcnt(0)", "s_barrier"]
    out += [f"s_mov_b32 s{sCNT}, 0", ".p2align 3", f"L_{tag}_loop:"]
    if opt.get("steady"):
        out += [f"s_cmp_lg_u32 s{sCNT}, 1", f"s_cbranch_scc1 L_{tag}_st1"] + stamp(4) + ["s_waitcnt lgkmcnt(0)", f"L_{tag}_st1:"]
        out += [f"s_cmp_lg_u32 s{sCNT}, 6", f"s_cbranch_scc1 L_{tag}_st2"] + stamp(5) + ["s_waitcnt lgkmcnt(0)", f"L_{tag}_st2:"]
    for j in range(3):
        c3 = (j+1) % 3
        inb = opt.get("w2inburst", True)
        T = (j == 0)
        out += tr(opt, 0, T)
        out += q_burst((c3+2) % 3, has_l, c3 if inb else None, tr(opt, 1, T))
        out += tr(opt, 2, T)
        if j == 2:
            out += [f"s_cmp_eq_u32 s{sCNT}, 7", f"s_cbranch_scc1 L_{tag}_epi"]
        if not inb: out += q_w2_reads(c3, has_l)
        lim = [7, 7, 6][j]
        out += [f"s_cmp_ge_u32 s{sCNT}, {lim}", f"s_cbranch_scc1 L_{tag}_nodma{j}"]
        out += q_dma(c3, (c3+2) % 3)
        out += tr(opt, 3, T)
        out += ["s_waitcnt vmcnt(6) lgkmcnt(0)"] + tr(opt, 4, T) + [f"s_branch L_{tag}_bar{j}", f"L_{tag}_nodma{j}:"]
        if j == 2:
            out += dma_one(2, 0, (c3+2) % 3) + ["s_waitcnt vmcnt(3) lgkmcnt(0)"]
        else:
            out += ["s_waitcnt vmcnt(0) lgkmcnt(0)"]
        out += [f"L_{tag}_bar{j}:", "s_barrier"] + tr(opt, 6, T)
    out += [f"s_add_u32 s{sCNT}, s{sCNT}, 1", f"s_branch L_{tag}_loop", ".p2align 3", f"L_{tag}_epi:"]
    return out

def q_epilogue(opt, lane="v9"):
    mod = opt.get("stmod", "sc0 sc1")
    out = ["s_waitcnt lgkmcnt(0)", "v_mbcnt_lo_u32_b32 v9, -1, 0", "v_mbcnt_hi_u32_b32 v9, -1, v9"]
    if opt.get("swap", True):
        out += ["v_and_b32 v10, 15, v9", "v_mul_u32_u24 v10, 384, v10",
                "v_bfe_u32 v11, v9, 4, 1", "v_lshl_add_u32 v10, v11, 5, v10",
                "v_lshrrev_b32 v11, 5, v9", "v_lshl_add_u32 v10, v11, 4, v10"]
    else:
        out += ["v_and_b32 v10, 15, v9", "v_mul_u32_u24 v10, 384, v10",
                "v_lshrrev_b32 v11, 5, v9", "v_lshl_add_u32 v10, v11, 4, v10",
                "v_bfe_u32 v11, v9, 4, 1", "s_mov_b32 s26, 86016", "v_mul_lo_u32 v11, v11, s26", "v_add_u32 v10, v10, v11"]
    out += [f"s_lshl_b32 s26, s{sPa}, 1", f"s_add_u32 s26, s26, s{sR0}", "s_add_u32 s26, s26, 1",
            "s_mul_i32 s26, s26, 224", f"s_add_u32 s26, s26, s{sC0}", "s_mul_i32 s26, s26, 384",
            f"s_mul_i32 s27, s{sHb}, 192", "s_add_u32 s26, s26, s27", "s_add_u32 s27, s26, 86016", "s_nop 7"]
    T = Q_W
    k = 0
    for s in range(3):
        for b in range(3):
            d = Z[s]+16*b
            t = T + 8*(k % 3); k += 1
            for i in range(8):
                out.append(f"v_cvt_pk_bf16_f32 v{t+i}, v{d+2*i}, v{d+2*i+1}")
            if opt.get("swap", True):
                out.append("s_nop 1")
                for i in range(4):
                    out.append(f"v_permlane16_swap_b32 v{t+i}, v{t+4+i}")
                out.append(f"buffer_store_dwordx4 {vr(t,4)}, v10, s[{SRD_OUT}:{SRD_OUT+3}], s26 offen offset:{64*b} {mod}")
                out.append(f"buffer_store_dwordx4 {vr(t+4,4)}, v10, s[{SRD_OUT}:{SRD_OUT+3}], s27 offen offset:{64*b} {mod}")
            else:
                out.append(f"buffer_store_dwordx4 {vr(t,4)}, v10, s[{SRD_OUT}:{SRD_OUT+3}], s26 offen offset:{64*b} {mod}")
                out.append(f"buffer_store_dwordx4 {vr(t+4,4)}, v10, s[{SRD_OUT}:{SRD_OUT+3}], s26 offen offset:{64*b+32} {mod}")
        out += [f"s_add_u32 s26, s26, {4*86016}", f"s_add_u32 s27, s27, {4*86016}"]
    if opt["has_l"]:
        out += [f"s_cmp_eq_u32 s{sH13}, 0", "s_cbranch_scc1 L_Q_nol",
                "v_and_b32 v10, 15, v9", "v_mul_u32_u24 v10, 384, v10",
                "v_lshrrev_b32 v11, 4, v9", "v_lshl_add_u32 v10, v11, 3, v10",
                f"s_mul_i32 s26, s{sR0}, 224", f"s_add_u32 s26, s26, s{sC0}", "s_mul_i32 s26, s26, 384",
                f"s_and_b32 s27, s{sW}, 3", "s_mul_i32 s27, s27, 96", "s_add_u32 s26, s26, s27"]
        for b in range(3):
            d = Q_AL+4*b
            out += [f"v_cvt_pk_bf16_f32 v{Q_G+2*b}, v{d}, v{d+1}", f"v_cvt_pk_bf16_f32 v{Q_G+2*b+1}, v{d+2}, v{d+3}",
                    f"buffer_store_dwordx2 {vr(Q_G+2*b,2)}, v10, s[{SRD_OUT}:{SRD_OUT+3}], s26 offen offset:{32*b} {mod}"]
        out.append("L_Q_nol:")
    return out

TRACE = [False]
def stamp(idx):
    if TRACE[0]: return []
    return [f"s_memtime s[{72+4*idx}:{73+4*idx}]", f"s_memrealtime s[{74+4*idx}:{75+4*idx}]"]

def stamp_out(n):
    out = ["s_waitcnt vmcnt(0) lgkmcnt(0)", "s_lshl_b32 s26, s2, 3", f"s_add_u32 s26, s26, s{sW}", "s_lshl_b32 s26, s26, 6", "v_mov_b32 v10, s26"]
    if TRACE[0]: n = 4
    for i in range(n):
        out += [f"v_mov_b32 v12, s{72+4*i}", f"v_mov_b32 v13, s{74+4*i}",
                f"buffer_store_dwordx2 v[12:13], v10, s[{SRD_WS}:{SRD_WS+3}], 0 offen offset:{8*i}", "s_waitcnt vmcnt(0)"]
    return out

def render(L, opt={}):
    import re
    for pat in opt.get("drop", []):
        assert pat.startswith(("v_", "ds_", "buffer_load_dwordx4 v[78]", "s_setprio")), pat
        L = [l for l in L if not re.match(pat, l)]
    L = hazard.fix(L)
    if opt.get("align8"):
        L = align8(L)
    L = L + ["L_code_end:"]
    flow.check(L)
    return header() + "\n".join(("" if l.endswith(":") or l.startswith(".") else "    ") + l for l in L) + footer()

def isize(l):
    import re
    if l.endswith(":") or l.startswith("."): return 0
    op = l.split()[0]
    if op.startswith("s_"):
        if op.startswith(("s_load", "s_memtime", "s_memrealtime")): return 8
        if op.startswith(("s_waitcnt", "s_nop", "s_barrier", "s_setprio", "s_cbranch", "s_branch", "s_endpgm", "s_sleep")): return 4
        lit = [x for x in re.findall(r"(?<![\w\[:])(0x[0-9a-f]+|-?\d+)\b(?![:\]])", l.split(None,1)[1])]
        return 8 if any(not (-16 <= int(x, 0) <= 64) for x in lit) else 4
    return None
def align8(L):
    out = []
    prev4 = False
    for l in L:
        sz = isize(l)
        if sz is None and prev4:
            out.append(".p2align 3")
        if sz != 0: prev4 = (sz == 4)
        out.append(l)
    return out

def code_prefetch(nbytes, vtmp="v10", vdst="v11", srdreg=52):
    out = [f"s_getpc_b64 s[{srdreg}:{srdreg+1}]", "L_pc:", f"s_mov_b32 s{srdreg+2}, L_code_end-L_pc", f"s_mov_b32 s{srdreg+3}, 0x20000",
           f"v_lshlrev_b32 {vtmp}, 6, v0"]
    for i in range((nbytes+32767)//32768):
        out += [f"s_mov_b32 s26, {i*32768}", f"buffer_load_dword {vdst}, {vtmp}, s[{srdreg}:{srdreg+3}], s26 offen"]
    return out
```

```python
import re
from hazard import split_ops
M = 0xffffffff
class Unknown:
    def __repr__(s): return "?"
U = Unknown()
def sx(v): return v - (1 << 32) if v & 0x80000000 else v
def run(L, wg, wave, sW=20, limit=200000):
    labels = {l[:-1]: i for i, l in enumerate(L) if l.endswith(":")}
    S = {2: wg, 0: ("ka", 0), 1: ("ka", 1)}
    pending = set(); scc = U; pc = 0; bars = 0; n = 0; trace = []
    def rd(x):
        x = x.strip()
        m = re.fullmatch(r"s(\d+)", x)
        if m:
            r = int(m.group(1))
            if r in pending: raise RuntimeError(f"s{r} read before lgkmcnt(0): {L[pc]}")
            if r not in S: raise RuntimeError(f"s{r} read uninitialised: {L[pc]}")
            return S[r]
        if x in ("m0", "exec_lo", "exec_hi", "vcc_lo", "vcc_hi"): return S.get(x, U)
        if x == "L_code_end-L_pc": return 1
        return int(x, 0) & M
    def wr(x, v):
        m = re.fullmatch(r"s(\d+)", x)
        if m: S[int(m.group(1))] = v; pending.discard(int(m.group(1)))
        else: S[x] = v
    def rng(x):
        m = re.fullmatch(r"s\[(\d+):(\d+)\]", x); return list(range(int(m.group(1)), int(m.group(2))+1))
    isint = lambda *a: all(isinstance(v, int) for v in a)
    while True:
        n += 1
        if n > limit: raise RuntimeError("does not terminate")
        if pc >= len(L): raise RuntimeError("ran off the end")
        l = L[pc]
        if l.endswith(":") or l.startswith("."): pc += 1; continue
        op, o = split_ops(l)
        nxt = pc+1
        if op == "s_endpgm": return bars, trace
        elif op == "s_barrier": bars += 1; trace.append(pc)
        elif op.startswith("s_load"):
            base = rng(o[1]); assert S[base[0]] == ("ka", 0), l
            off = int(o[2], 0)
            for i, r in enumerate(rng(o[0]) if "[" in o[0] else [int(o[0][1:])]):
                S[r] = ("ptr", off+4*i); pending.add(r)
        elif op in ("s_memtime", "s_memrealtime", "s_getpc_b64"):
            for r in rng(o[0]):
                S[r] = ("pc",) if op == "s_getpc_b64" else U
                if op != "s_getpc_b64": pending.add(r)
        elif op == "s_waitcnt":
            if "lgkmcnt(0)" in l: pending.clear()
        elif op in ("s_nop", "s_setprio", "s_sleep"): pass
        elif op == "s_branch": nxt = labels[o[0]]
        elif op in ("s_cbranch_scc0", "s_cbranch_scc1"):
            if scc is U: raise RuntimeError("branch on unknown scc: "+l)
            if scc == (op[-1] == "1"): nxt = labels[o[0]]
        elif op.startswith("s_cbranch"): raise RuntimeError("unsupported branch "+l)
        elif op.startswith("s_cmp_"):
            a, b = rd(o[0]), rd(o[1])
            if not isint(a, b): scc = U
            else:
                k = op.split("_")[2]
                if op.endswith("i32"): a, b = sx(a), sx(b)
                scc = {"eq": a == b, "lg": a != b, "lt": a < b, "le": a <= b, "gt": a > b, "ge": a >= b}[k]
        elif op == "s_mov_b32": wr(o[0], rd(o[1]))
        elif op in ("s_mov_b64", "s_cselect_b64", "s_and_b64", "s_or_b64", "s_and_saveexec_b64", "s_lshl_b64", "s_not_b64", "s_andn2_b64"):
            if o[0].startswith("s["):
                for r in rng(o[0]): S[r] = U; pending.discard(r)
            if op not in ("s_mov_b64", "s_cselect_b64"): scc = U
        elif op == "s_cselect_b32":
            a, b = rd(o[1]), rd(o[2]); wr(o[0], U if scc is U else (a if scc else b))
        elif op.startswith("s_"):
            a, b = rd(o[1]), rd(o[2])
            if not isint(a, b):
                wr(o[0], a if (isinstance(a, tuple) and op in ("s_add_u32", "s_addc_u32", "s_and_b32")) else U); scc = U
            else:
                if op == "s_add_u32": r = a+b; scc = r > M
                elif op == "s_addc_u32": r = a+b+int(scc); scc = r > M
                elif op == "s_sub_u32": r = a-b; scc = b > a
                elif op == "s_mul_i32": r = a*b
                elif op == "s_and_b32": r = a & b; scc = r != 0
                elif op == "s_or_b32": r = a | b; scc = r != 0
                elif op == "s_xor_b32": r = a ^ b; scc = r != 0
                elif op == "s_lshl_b32": r = a << (b & 31); scc = (r & M) != 0
                elif op == "s_lshr_b32": r = a >> (b & 31); scc = r != 0
                elif op == "s_max_u32": r = max(a, b); scc = a > b
                elif op == "s_min_u32": r = min(a, b); scc = a < b
                elif op == "s_max_i32": r = max(sx(a), sx(b)); scc = sx(a) > sx(b)
                elif op == "s_min_i32": r = min(sx(a), sx(b)); scc = sx(a) < sx(b)
                elif op == "s_bfe_u32": r = (a >> (b & 31)) & ((1 << ((b >> 16) & 127))-1); scc = r != 0
                else: raise RuntimeError("unsupported salu "+l)
                wr(o[0], r & M)
        elif op == "v_readfirstlane_b32":
            wr(o[0], wave if o[0] == f"s{sW}" else U)
        elif op.startswith("buffer_"):
            srd = [x for x in o if x.startswith("s[")][0]
            r = rng(srd)
            v = [rd(f"s{x}") for x in r]
            okp = (isinstance(v[0], tuple) and isinstance(v[1], tuple) and
                   ((v[0][0] == "ptr" and v[1] == ("ptr", v[0][1]+4)) or (v[0][0] == "pc" and v[1][0] == "pc")))
            if not (okp and isint(v[2]) and v[3] == 0x20000): raise RuntimeError(f"bad descriptor {v}: {l}")
            if v[0][0] == "ptr":
                lim = {0: 19267584, 8: 3456, 16: 9600, 24: 294912, 32: 294912, 40: 19267584, 48: 256, 56: 268435456}[v[0][1]]
                if v[2] > lim: raise RuntimeError(f"num_records {v[2]} > {lim}: {l}")
                if "store" in op and v[0][1] < 40: raise RuntimeError("store to an input: "+l)
            elif "store" in op: raise RuntimeError("store through pc base")
            so = o[o.index(srd)+1].split()[0]
            if so.startswith("s"):
                if not isint(rd(so)): raise RuntimeError("unknown soffset "+l)
        elif op.startswith("global_") or op.startswith("flat_"): raise RuntimeError("no global/flat ops allowed: "+l)
        elif op.startswith("v_cmp") or op.startswith("v_"):
            for x in o[1:]:
                if re.fullmatch(r"-?s\d+", x): rd(x.lstrip("-"))
            if o and o[0].startswith("s["):
                for r in rng(o[0]): S[r] = U
        pc = nxt
def check(L):
    for wg in (0, 1, 7, 13, 100, 251, 252, 259):
        res = [run(L, wg, w)[0] for w in range(8)]
        if len(set(res)) != 1: raise RuntimeError(f"barrier mismatch wg {wg}: {res}")
```

```python
import re
REG = re.compile(r"\b([vs])\[(\d+):(\d+)\]|\b([vs])(\d+)\b|\b(vcc|exec|m0)\b")
def regs(txt):
    out = set()
    for m in REG.finditer(txt):
        if m.group(1): out |= {(m.group(1), i) for i in range(int(m.group(2)), int(m.group(3))+1)}
        elif m.group(4): out.add((m.group(4), int(m.group(5))))
        else: out.add((m.group(6), 0))
    return out
def split_ops(ln):
    ln = ln.split(";")[0].strip()
    parts = ln.split(None, 1)
    op = parts[0]
    if len(parts) == 1: return op, []
    rest = parts[1]
    ops = []; depth = 0; cur = ""
    for ch in rest:
        if ch == "[": depth += 1
        if ch == "]": depth -= 1
        if ch == "," and depth == 0: ops.append(cur.strip()); cur = ""
        else: cur += ch
    ops.append(cur.strip())
    ops[-1] = ops[-1].split()[0] if ops[-1] else ops[-1]
    return op, ops
class I:
    def __init__(s, ln):
        s.txt = ln
        s.label = ln.endswith(":") or ln.startswith(".")
        s.op, o = ("", []) if s.label else split_ops(ln)
        op = s.op
        s.mfma = op.startswith("v_mfma") or op.startswith("v_smfmac")
        s.valu = op.startswith("v_") and not s.mfma
        s.ds = op.startswith("ds_"); s.vmem = op.startswith("buffer_") or op.startswith("global_")
        s.salu = op.startswith("s_")
        s.trans = bool(re.match(r"v_(exp|log|rcp|rsq|sqrt|sin|cos)_", op))
        s.w = set(); s.r = set(); s.srcc = set(); s.ab = set(); s.data = set()
        s.states = 1
        if s.label: s.states = 0
        if op == "s_nop": s.states = int(o[0])+1
        if s.mfma:
            s.w = regs(o[0]); s.ab = regs(o[1]) | regs(o[2])
            if op.startswith("v_smfmac"): s.srcc = set(s.w); s.ab |= regs(o[3])
            else: s.srcc = regs(o[3])
            s.r = s.ab | s.srcc
            s.passes = 8 if "32x32" in op else 4
        elif s.valu:
            if op.startswith("v_cmp"):
                s.w = regs(o[0]); s.r = set().union(*[regs(x) for x in o[1:]])
            elif "permlane" in op and "swap" in op:
                s.w = regs(o[0]) | regs(o[1]); s.r = set(s.w)
            else:
                s.w = regs(o[0]); s.r = set().union(*[regs(x) for x in o[1:]]) if len(o) > 1 else set()
                if "fmac" in op or "PRESERVE" in ln or "mixhi" in op or "mixlo" in op or "_d16" in op: s.r |= s.w
                if op.startswith("v_cndmask") and len(o) == 3: s.r.add(("vcc", 0))
        elif s.ds:
            if "read" in op: s.w = regs(o[0]); s.r = regs(o[1])
            else: s.r = set().union(*[regs(x) for x in o]); s.data = set().union(*[regs(x) for x in o[1:]])
        elif s.vmem:
            if "store" in op:
                s.r = set().union(*[regs(x) for x in o]); s.data = regs(o[0]) if op.startswith("buffer") else regs(o[1])
            elif " lds" in ln:
                s.r = set().union(*[regs(x) for x in o]) | {("m0", 0)}
            else:
                s.w = regs(o[0]); s.r = set().union(*[regs(x) for x in o[1:]])
        elif s.salu and o:
            if op.startswith("s_cmp") or op.startswith("s_waitcnt") or op.startswith("s_cbranch") or op.startswith("s_branch") or op == "s_setprio":
                s.r = set().union(*[regs(x) for x in o])
            else:
                s.w = regs(o[0]); s.r = set().union(*[regs(x) for x in o[1:]]) if len(o) > 1 else set()
        s.sdwa_shift = s.valu and ("dst_sel:WORD_1" in ln or "mixhi" in op or "dst_sel:BYTE" in ln)
        s.wide_store = s.vmem and "store" in op and ("x3" in op or "x4" in op)
def need(p, c):
    n = 0
    vw = {x for x in p.w if x[0] == "v"}; sw = {x for x in p.w if x[0] != "v"}
    if p.mfma:
        big = p.passes == 8
        if c.mfma:
            if vw & c.ab: n = max(n, 12 if big else 8)
            if vw & c.srcc:
                if not (vw == c.srcc and p.op == c.op): n = max(n, 10 if big else 6)
            elif vw & c.w: n = max(n, 10 if big else 6)
        elif c.valu or c.ds or c.vmem:
            if vw & (c.r | c.w): n = max(n, 12 if big else 8)
        if c.valu and (p.srcc & c.w): n = max(n, 7 if big else 3)
    if p.valu:
        if c.mfma and vw & c.r: n = max(n, 2)
        if p.trans and c.valu and vw & c.r and not c.trans: n = max(n, 1)
        if p.trans and c.valu and vw & c.r and c.trans: n = max(n, 1)
        if p.sdwa_shift and c.valu and vw & (c.r | c.w): n = max(n, 1)
        if c.valu and "permlane" in c.op and vw & c.r: n = max(n, 2)
        if c.valu and "dpp" in c.txt and vw & c.r: n = max(n, 2)
        if c.valu and c.op.startswith("v_read") and vw & c.r: n = max(n, 1)
        if c.vmem and sw & c.r: n = max(n, 5)
        if c.valu and sw & c.r: n = max(n, 2)
        if c.salu and sw & c.r: n = max(n, 1)
        if ("exec", 0) in sw and c.mfma: n = max(n, 4)
    if p.salu and ("m0", 0) in p.w and c.vmem and ("m0", 0) in c.r: n = max(n, 1)
    if p.wide_store and c.valu and p.data & c.w: n = max(n, 2)
    if p.wide_store and (c.ds or c.vmem) and p.data & c.w: n = max(n, 1)
    return n
def fix(lines, history=None, insert=True):
    hist = [I(l) for l in (history or [])]
    out = []
    for ln in lines:
        c = I(ln)
        if not c.label:
            dist = 0; pad = 0
            for p in reversed(hist):
                if dist >= 20: break
                pad = max(pad, need(p, c) - dist)
                dist += p.states
            if pad > 0:
                if not insert: raise RuntimeError(f"hazard before: {ln} (need {pad})")
                nop = f"s_nop {pad-1}"
                out.append(nop); hist.append(I(nop))
        out.append(ln); hist.append(c)
        if len(hist) > 64: hist = hist[-40:]
    return out
```

```python
import math, struct
import numpy as np

C0 = 2*math.sqrt(2/math.pi)*math.log2(math.e)
C1 = C0*0.044715
SC = C1**(1/3)
KC = C0/SC
def f32bits(x): return struct.unpack("<I", struct.pack("<f", x))[0]
def f16pk(x):
    h = int(np.float16(x).view(np.uint16)); return h | (h << 16)

BS   = 31232
B1, B2, B3, B4 = 0, BS, 2*BS, 3*BS
MR   = 4*BS
W1S  = [MR, MR+12288, MR-12288]
W2S  = [BS, BS+12288, BS-12288]
GSZ  = 13312
GS   = [B3, B3+GSZ, B3+2*GSZ]
XLO  = MR+24576
PART = MR+30720
LDS_BYTES = 163840
W1BASE = min(W1S); W2BASE = min(W2S); GBASE = GS[0]

Z = [12, 60, 124]
SP = 108
HI = 172
P_XL  = HI
P_W   = HI+24
P_H   = HI+48
P_T   = HI+76
P_G   = SP
P_Y   = SP+14
vW1A, vGW, vGLW = 1, 2, 3
Q_AL  = HI
Q_W   = HI+12
Q_WL  = HI+36
Q_G   = HI+48
Q_GL  = HI+72
vW2A, vW2B, vW2L0, vW2L1, vW2L2, vGR, vD1, vD2 = 1, 2, 3, 4, 5, 6, 7, 8
sK, sS = 60, 61
sPA = 62
sCNT = 64
sD1, sD2 = 65, 66
sM1, sM2 = 67, 68
SRD_W1, SRD_W2 = 40, 44

def vr(a, n): return f"v[{a}:{a+n-1}]"

def xreg(tile, kap):
    return Z[tile//2] + 24*(tile % 2) + 4*kap

def gelu_ops(y, npairs, temps, gout, mode):
    P = range(npairs)
    u = [temps+2*p for p in P]; t = [temps+2*p+1 for p in P]
    ops = []
    if mode == "f16":
        ops += [(f"v_cvt_pk_f16_f32 v{u[p]}, v{y[2*p]}, v{y[2*p+1]}", 1) for p in P]
        ops += [(f"v_pk_fma_f16 v{t[p]}, v{u[p]}, v{u[p]}, s{sK}", 1) for p in P]
        ops += [(f"v_pk_mul_f16 v{t[p]}, v{u[p]}, v{t[p]} neg_lo:[1,0] neg_hi:[1,0]", 1) for p in P]
        ops += [(f"v_exp_f16_sdwa v{u[p]}, v{t[p]} dst_sel:WORD_0 dst_unused:UNUSED_PAD src0_sel:WORD_0", 2) for p in P]
        ops += [(f"v_exp_f16_sdwa v{u[p]}, v{t[p]} dst_sel:WORD_1 dst_unused:UNUSED_PRESERVE src0_sel:WORD_1", 2) for p in P]
        ops += [(f"v_pk_fma_f16 v{u[p]}, v{u[p]}, s{sS}, s{sS}", 1) for p in P]
        ops += [(f"v_rcp_f16_sdwa v{t[p]}, v{u[p]} dst_sel:WORD_0 dst_unused:UNUSED_PAD src0_sel:WORD_0", 2) for p in P]
        ops += [(f"v_rcp_f16_sdwa v{u[p]}, v{u[p]} dst_sel:WORD_0 dst_unused:UNUSED_PAD src0_sel:WORD_1", 2) for p in P]
        ops += [(f"v_fma_mix_f32 v{y[2*p]}, v{y[2*p]}, v{t[p]}, 0 op_sel_hi:[0,1,0]", 1) for p in P]
        ops += [(f"v_fma_mix_f32 v{y[2*p+1]}, v{y[2*p+1]}, v{u[p]}, 0 op_sel_hi:[0,1,0]", 1) for p in P]
        ops += [(f"v_cvt_pk_bf16_f32 v{gout+p}, v{y[2*p]}, v{y[2*p+1]}", 1) for p in P]
    else:
        E = range(2*npairs)
        tt = [temps+e for e in E]
        ops += [(f"v_fma_f32 v{tt[e]}, v{y[e]}, v{y[e]}, s{sK}", 1) for e in E]
        ops += [(f"v_mul_f32_e64 v{tt[e]}, -v{y[e]}, v{tt[e]}", 1) for e in E]
        ops += [(f"v_exp_f32_e64 v{tt[e]}, v{tt[e]}", 2) for e in E]
        ops += [(f"v_fma_f32 v{tt[e]}, v{tt[e]}, s{sS}, s{sS}", 1) for e in E]
        ops += [(f"v_rcp_f32_e64 v{tt[e]}, v{tt[e]}", 2) for e in E]
        ops += [(f"v_mul_f32_e64 v{y[e]}, v{y[e]}, v{tt[e]}", 1) for e in E]
        ops += [(f"v_cvt_pk_bf16_f32 v{gout+p}, v{y[2*p]}, v{y[2*p+1]}", 1) for p in P]
    return ops

def gelu_stream(gslot, mode, has_l, w2=True):
    out = []
    goff = GS[gslot] - GBASE
    for tile in range(6):
        y = [P_H+4*tile+i for i in range(4)]
        g = P_G + 2*tile
        for txt, c in gelu_ops(y, 2, P_T + 4*(tile % 2), g, mode):
            out.append((txt, c, 'v', tile))
        s, rp = tile//2, tile % 2
        if not w2:
            out.append((f"ds_write_b64 v{vGW}, {vr(g,2)} offset:{goff + s*4096 + rp*512}", 0, 'w', tile))
        elif rp == 1:
            o = (goff + s*4096)//512
            out.append((f"ds_write2st64_b64 v{vGW}, {vr(g-2,2)}, {vr(g,2)} offset0:{o} offset1:{o+1}", 0, 'w', tile))
    if has_l:
        hl = P_H+24
        out.append((f"v_cndmask_b32 v{P_Y}, v{hl}, v{hl+2}, s[{sPA}:{sPA+1}]", 1, 'v', 6))
        out.append((f"v_cndmask_b32 v{P_Y+1}, v{hl+1}, v{hl+3}, s[{sPA}:{sPA+1}]", 1, 'v', 6))
        for txt, c in gelu_ops([P_Y, P_Y+1], 1, P_T, P_G+12, mode):
            out.append((txt, c, 'v', 6))
        out.append((f"ds_write_b32 v{vGLW}, v{P_G+12} offset:{goff}", 0, 'w', 6))
    return out

def chain(tile):
    d = P_H+4*tile
    out = []
    for kap in range(6):
        b = xreg(tile, kap) if tile < 6 else P_XL+4*kap
        c = "0" if kap == 0 else vr(d, 4)
        out.append(f"v_mfma_f32_16x16x32_bf16 {vr(d,4)}, {vr(P_W+4*kap,4)}, {vr(b,4)}, {c}")
    return out

def w1_reads(slot):
    off = W1S[slot]-W1BASE
    out = []
    for kap in range(6):
        for t in range(2):
            out.append(f"ds_read_b64_tr_b16 {vr(P_W+4*kap+2*t,2)}, v{vW1A} offset:{off + kap*2048 + t*256}")
    return out

class Stream:
    def __init__(self, ops, pend): self.ops = list(ops); self.i = 0; self.pend = pend
    def left(self): return len(self.ops)-self.i
    def take(self, slots, maxtile=99):
        out = []
        while self.i < len(self.ops):
            txt, c, kind, tile = self.ops[self.i]
            if kind == 'w':
                self.pend.append((txt, self)); self.i += 1; continue
            if tile > maxtile or c > slots: break
            slots -= c; out.append(txt); self.i += 1
        return out

_tr = [0]
def tr(opt, idx, on=True):
    if not opt.get("trace") or not on: return []
    _tr[0] += 1
    return [f"s_cmp_lg_u32 s{sCNT}, 4", f"s_cbranch_scc1 L_tr{_tr[0]}", f"s_memtime s[{72+2*idx}:{73+2*idx}]", f"L_tr{_tr[0]}:"]

def p_plan(opt):
    mode, has_l, nlate = opt["gelu"], opt["has_l"], opt["nlate"]
    w2 = opt.get("w2", True)
    tiles = list(range(7 if has_l else 6))
    early = tiles[:len(tiles)-nlate]; late = tiles[len(tiles)-nlate:]
    hi, lo = opt["prio_hi"], opt["prio_lo"]
    prio = lambda p: [f"s_setprio {p}"] if hi != lo else []
    vslots = [0]
    wslots = opt.get("wslots", 1)
    ilv = opt.get("ilv", True); wgap = opt.get("wgap", 6)
    def run_chains(tl, cur, cur_max, nxt, out, pend, reads=None, log=None):
        seq = []
        for ti, t in enumerate(tl):
            seq += [(ti, k, m) for k, m in enumerate(chain(t))]
        rd_at = {}
        if reads is not None:
            if ilv and len(tl) >= 2:
                a, b = seq[-12:-6], seq[-6:]
                seq = seq[:-12] + [x for p in zip(a, b) for x in p]
                n0 = len(seq)-12
                for r in range(12): rd_at.setdefault(min(n0+r+2, len(seq)-1), []).append(reads[r])
            else:
                n0 = len(seq)-6
                for r in range(12): rd_at.setdefault(min(n0+r//2+1, len(seq)-1), []).append(reads[r])
        lastw = -99
        done_at = {}
        for n, (ti, k, m) in enumerate(seq):
            if k == 5: done_at[tl[ti]] = n
        def ready(n):
            r = tl[0]-1
            for t in tl:
                if done_at[t]+4 <= n: r = t
                else: break
            return r
        for n, (ti, k, m) in enumerate(seq):
            out.append(m)
            room = 2
            if n in rd_at:
                out += rd_at[n]; room = max(0, 2-len(rd_at[n]))
            elif pend and n-lastw >= wgap:
                txt, owner = pend.pop(0)
                out.append(txt); room = wslots; lastw = n
                if log is not None: log.append(owner)
            f = []
            if cur is not None and cur.left():
                f = cur.take(room, (99 if cur_max is None else (ready(n) if n >= 3 else tl[0]-2)))
            if not f and nxt is not None and (cur is None or not cur.left()):
                f = nxt.take(room, ready(n))
            out += f
    def step(c3, last=False, state=None, trace=False):
        out = []
        pend = []
        full = gelu_stream(c3, mode, has_l, w2)
        cur = Stream(full, pend); cur.i = state
        T = (c3 == 1 and not last and trace)
        out += tr(opt, 0, T)
        out += prio(hi)
        run_chains(late, cur, True, None, out, pend,
                   reads=None if last else w1_reads((c3+1) % 3))
        out += tr(opt, 1, T)
        out += prio(lo)
        if last:
            out += cur.take(9999) + [p[0] for p in pend]
            out += ["s_waitcnt lgkmcnt(0)", "s_barrier"]
            return out, None
        out += cur.take(vslots[0])
        nxt = Stream(gelu_stream((c3+1) % 3, mode, has_l, w2)[:state], pend)
        out += tr(opt, 2, T)
        out.append("s_waitcnt lgkmcnt(0)")
        out += tr(opt, 3, T)
        out += prio(hi)
        log = []
        run_chains(early, cur, None, nxt, out, pend, log=log)
        assert cur.left() == 0 and not pend, ("gelu not finished", cur.left())
        nw = sum(1 for o in log if o is nxt)
        out += tr(opt, 4, T)
        out += [f"s_waitcnt lgkmcnt({nw})"] + tr(opt, 5, T) + ["s_barrier"] + tr(opt, 6, T)
        return out, nxt.i
    def pre(target):
        out = w1_reads(0) + ["s_waitcnt lgkmcnt(0)"]
        pend = []
        nxt = Stream(gelu_stream(0, mode, has_l, w2)[:target], pend)
        run_chains(early, None, None, nxt, out, pend)
        out += nxt.take(9999) + [p[0] for p in pend]
        out += ["s_waitcnt lgkmcnt(0)", "s_barrier"]
        return out
    st = opt["lead"]
    for v in range(40, 260):
        vslots[0] = v
        try:
            _, n = step(0, state=st)
        except AssertionError:
            continue
        if n == st: break
    else:
        raise RuntimeError("no schedule")
    vslots[0] += opt.get("vextra", 0)
    opt["_vslots"] = vslots[0]
    return st, step, pre

def q_w2_reads(slot, has_l):
    off = W2S[slot]-W2BASE
    out = []
    for hb in range(2):
        for b in range(3):
            a = vW2A if b != 1 else vW2B
            for t in range(2):
                o = off + (4096 if b == 2 else 0) + hb*2048 + t*512
                out.append(f"ds_read_b64_tr_b16 {vr(Q_W+4*(3*hb+b)+2*t,2)}, v{a} offset:{o}")
    if has_l:
        for b in range(3):
            for t in range(2):
                out.append(f"ds_read_b64_tr_b16 {vr(Q_WL+4*b+2*t,2)}, v{[vW2L0,vW2L1,vW2L2][b]} offset:{off + t*512}")
    return out

def q_dma(w1slot, w2slot):
    out = []
    for i in range(3):
        out += [f"s_add_u32 m0, s{sM1}, {W1S[w1slot] + i*1024}",
                f"s_add_u32 s69, s{sD1}, {i*16*1536}",
                f"buffer_load_dwordx4 v{vD1}, s[{SRD_W1}:{SRD_W1+3}], s69 offen lds"]
    for i in range(3):
        out += [f"s_add_u32 m0, s{sM2}, {W2S[w2slot] + i*4096}",
                f"s_add_u32 s69, s{sD2}, {i*128}",
                f"buffer_load_dwordx4 v{vD2}, s[{SRD_W2}:{SRD_W2+3}], s69 offen lds"]
    out += [f"s_add_u32 s{sD1}, s{sD1}, 64", f"s_add_u32 s{sD2}, s{sD2}, 12288"]
    return out

def q_burst(gslot, has_l, w2slot=None, mid=[]):
    goff = GS[gslot]-GBASE
    out = []
    for hb in range(2):
        for s in range(3):
            out.append(f"ds_read_b128 {vr(Q_G+4*(3*hb+s),4)}, v{vGR} offset:{goff + s*4096 + hb*1024}")
    if has_l:
        out.append(f"ds_read_b128 {vr(Q_GL,4)}, v0 offset:{goff}")
    rd = q_w2_reads(w2slot, has_l) if w2slot is not None else None
    tot = 7 if has_l else 6
    seq = []
    k = 0
    for hb in range(2):
        for s in range(3):
            k += 1
            for b in range(3):
                d = Z[s]+16*b
                seq.append((f"v_mfma_f32_32x32x16_bf16 {vr(d,16)}, {vr(Q_W+4*(3*hb+b),4)}, {vr(Q_G+4*(3*hb+s),4)}, {vr(d,16)}",
                            k if b == 0 else None, (3*hb+b) if s == 2 else None))
    if has_l:
        for b in range(3):
            d = Q_AL+4*b
            seq.append((f"v_mfma_f32_16x16x32_bf16 {vr(d,4)}, {vr(Q_WL+4*b,4)}, {vr(Q_GL,4)}, {vr(d,4)}", 7 if b == 0 else None, 6+b))
    extra = 0; dead = []
    for txt, w, frees in seq:
        if w is not None: out.append(f"s_waitcnt lgkmcnt({min(15, tot-w+extra)})")
        if w == 1: out += mid
        out.append(txt)
        if rd is not None and dead:
            f = dead.pop(0); out += rd[2*f:2*f+2]; extra += 2
        if frees is not None: dead.append(frees)
    if rd is not None:
        for f in dead: out += rd[2*f:2*f+2]
    return out
```

```python
from common import *

SRD_DL, SRD_DS = 52, 56
SRD_PC = 48
OP = 1296
B0 = MR; OP0 = 336
TB = MR + 8192 - 128; TW = 2880
XRP = 6160
XST = [B1, B2, B1]
A0, D0, POOL = HI, 232, SP
vXL, vXW, vC = 1, 2, [3, 4, 5, 6]
vIDX, vLANE, vT0, vT1, vPART, vXS = 8, 9, 10, 11, 0, 1
STG = [Z[0]+24+4*i for i in range(5)] + [Z[0]+8+4*i for i in range(4)] + [Z[1]+32+4*i for i in range(4)] + [Z[2]+32+4*i for i in range(4)]
BIG = "0x80000000"
LDSOOB = LDS_BYTES
sROW, sT0, sT1, sT2 = 30, 26, 27, 28
assert TB + 8*TW <= LDS_BYTES and B0 + 24*OP0 <= TB

def conv(kind):
    out = [f"v_mov_b32 v{D0+i}, 0" for i in range(24)]
    def reads(g):
        b = POOL + 20*(g % 2)
        r = []
        for rho in range(5):
            if kind == 'L':
                if rho == 0: a, o = vC[0], (g >> 1)*OP0 + (g & 1)*160
                else: a, o = vC[1], (g >> 1)*OP + (g & 1)*160 + (rho-1)*320
            else:
                a = vC[rho % 4]; o = (g >> 1)*OP + (g & 1)*160 + (BS if rho == 4 else 0)
            r.append(f"ds_read_b128 {vr(b+4*rho,4)}, v{a} offset:{o}")
        return r
    def stats(g):
        d = D0+4*g
        r = []
        for i in range(4):
            if g == 0 and i == 0:
                r += [f"v_mov_b32 v{vT0}, v{d}", f"v_mul_f32 v{vT1}, v{d}, v{d}"]
            else:
                r += [f"v_add_f32 v{vT0}, v{vT0}, v{d+i}", f"v_fmac_f32 v{vT1}, v{d+i}, v{d+i}"]
        return r
    pre = reads(0) + reads(1)
    out = pre[:10] + out
    for g in range(6):
        b = POOL + 20*(g % 2); a = A0 + 10*g; d = D0+4*g
        out.append(f"s_waitcnt lgkmcnt({5 if g < 5 else 0})")
        out += [f"v_smfmac_f32_16x16x64_bf16 {vr(d,4)}, {vr(a,4)}, {vr(b,8)}, v{vIDX}",
                f"v_smfmac_f32_16x16x64_bf16 {vr(d,4)}, {vr(a+4,4)}, {vr(b+8,8)}, v{vIDX}"]
        if g+2 < 6: out += reads(g+2)[:4]
        if g >= 1: out += stats(g-1)
        out.append(f"v_smfmac_f32_16x16x32_bf16 {vr(d,4)}, {vr(a+8,2)}, {vr(b+16,4)}, v{vIDX}")
        if g+2 < 6: out += reads(g+2)[4:]
    out += stats(5)
    out += [f"s_lshl_b32 s{sT0}, s{sW}, 9", f"v_add_u32 v{POOL}, s{sT0}, v{vPART}",
            f"ds_write_b64 v{POOL}, v[{vT0}:{vT1}]"]
    return out

def layernorm(xoff):
    out = [f"ds_read2st64_b64 {vr(POOL+4*i,4)}, v{vPART} offset0:{2*i} offset1:{2*i+1}" for i in range(4)]
    out.append("s_waitcnt lgkmcnt(0)")
    p = POOL
    out += [f"v_pk_add_f32 {vr(p,2)}, {vr(p,2)}, {vr(p+2,2)}", f"v_pk_add_f32 {vr(p+4,2)}, {vr(p+4,2)}, {vr(p+6,2)}",
            f"v_pk_add_f32 {vr(p+8,2)}, {vr(p+8,2)}, {vr(p+10,2)}", f"v_pk_add_f32 {vr(p+12,2)}, {vr(p+12,2)}, {vr(p+14,2)}",
            f"v_pk_add_f32 {vr(p,2)}, {vr(p,2)}, {vr(p+4,2)}", f"v_pk_add_f32 {vr(p+8,2)}, {vr(p+8,2)}, {vr(p+12,2)}",
            f"v_pk_add_f32 {vr(p,2)}, {vr(p,2)}, {vr(p+8,2)}",
            f"v_mul_f32 v{p}, {hex(f32bits(1/192))}, v{p}",
            f"v_mul_f32 v{p+2}, v{p}, v{p}",
            f"v_fma_f32 v{p+1}, v{p+1}, s{sT2}, -v{p+2}",
            f"v_max_f32 v{p+1}, 0, v{p+1}",
            f"v_add_f32 v{p+1}, {hex(f32bits(1e-5))}, v{p+1}",
            f"v_rsq_f32 v{p+1}, v{p+1}",
            f"v_mul_f32 v{p+2}, {hex(f32bits(SC))}, v{p+1}",
            f"v_mul_f32_e64 v{p+4}, -v{p}, v{p+2}",
            f"v_mov_b32 v{p+3}, v{p+2}", f"v_mov_b32 v{p+5}, v{p+4}"]
    out = [f"s_mov_b32 s{sT2}, {hex(f32bits(1/192))}"] + out
    for j in range(3):
        for i in range(4):
            d = D0+8*j+2*i
            out.append(f"v_pk_fma_f32 {vr(d,2)}, {vr(d,2)}, {vr(p+2,2)}, {vr(p+4,2)}")
        for i in range(4):
            d = D0+8*j+2*i
            out.append(f"v_cvt_pk_bf16_f32 v{p+8+4*j+i}, v{d}, v{d+1}")
        out.append(f"ds_write_b128 v{vXS}, {vr(p+8+4*j,4)} offset:{xoff + 256*j}")
    return out

def xwrite(rows, areg):
    out = []
    for rib, r in rows:
        s = STG[r]
        out.append(f"ds_write2_b64 v{areg}, {vr(s,2)}, {vr(s+2,2)} offset0:{rib*40} offset1:{rib*40+20}")
    return out

_lab = [0]
def only(role, body):
    _lab[0] += 1
    l = f"L_only{_lab[0]}"
    return [f"s_cmp_ge_u32 s{sW}, 4", f"s_cbranch_scc{1 if role == 'P' else 0} {l}"] + body + [l+":"]

def p_xread(s):
    t = POOL+36
    out = [f"s_mul_i32 s{sT0}, s{sPa}, {2*XRP}", f"v_lshl_add_u32 v{t}, v{vLANE}, 4, s{sT0}"]
    for rp in range(2):
        for kap in range(6):
            out.append(f"ds_read_b128 {vr(xreg(2*s+rp,kap),4)}, v{t} offset:{XST[s] + rp*XRP + kap*1024}")
    return out

def q_resid(s):
    t, u = POOL+36, POOL+37
    out = [f"v_and_b32 v{t}, 15, v{vLANE}", f"v_lshlrev_b32 v{t}, 3, v{t}",
           f"v_bfe_u32 v{u}, v{vLANE}, 4, 1", f"v_mul_u32_u24 v{u}, 320, v{u}", f"v_add_u32 v{t}, v{t}, v{u}",
           f"v_lshrrev_b32 v{u}, 5, v{vLANE}", f"v_mul_u32_u24 v{u}, {OP}, v{u}", f"v_add_u32 v{t}, v{t}, v{u}",
           f"s_mul_i32 s{sT0}, s{sPa}, {BS-640}", f"s_mul_i32 s{sT1}, s{sHb}, {12*OP}", f"s_add_u32 s{sT0}, s{sT0}, s{sT1}",
           f"s_add_u32 s{sT0}, s{sT0}, {s*BS + 640 + 16}", f"v_add_u32 v{t}, s{sT0}, v{t}"]
    for b in range(3):
        for j in range(4):
            out.append(f"ds_read_b64 {vr(Z[s]+24+2*(4*b+j),2)}, v{t} offset:{b*4*OP + (j >> 1)*2*OP + (j & 1)*160}")
    return out

def q_resid_l():
    t, u = POOL+36, POOL+37
    out = [f"v_and_b32 v{t}, 15, v{vLANE}", f"v_lshlrev_b32 v{t}, 3, v{t}",
           f"v_bfe_u32 v{u}, v{vLANE}, 4, 1", f"v_mul_u32_u24 v{u}, 160, v{u}", f"v_add_u32 v{t}, v{t}, v{u}",
           f"v_lshrrev_b32 v{u}, 5, v{vLANE}", f"v_mul_u32_u24 v{u}, {OP}, v{u}", f"v_add_u32 v{t}, v{t}, v{u}",
           f"s_and_b32 s{sT0}, s{sW}, 3", f"s_mul_i32 s{sT0}, s{sT0}, {6*OP}", f"s_add_u32 s{sT0}, s{sT0}, {320+16}",
           f"v_add_u32 v{t}, s{sT0}, v{t}"]
    for b in range(3):
        out.append(f"ds_read_b64 {vr(Z[0]+2*b,2)}, v{t} offset:{b*2*OP}")
    return out

def q_unpack():
    out = []
    for b in range(3):
        for i in range(2):
            r = Z[0]+2*b+i
            out += [f"v_lshlrev_b32 v{Q_AL+4*b+2*i}, 16, v{r}", f"v_and_b32 v{Q_AL+4*b+2*i+1}, 0xffff0000, v{r}"]
    for s in range(3):
        for k in range(24):
            r = Z[s]+24+k
            if k < 23:
                out += [f"v_lshlrev_b32 v{Z[s]+2*k}, 16, v{r}", f"v_and_b32 v{Z[s]+2*k+1}, 0xffff0000, v{r}"]
            else:
                out += [f"v_lshlrev_b32 v{Z[s]+46}, 16, v{r}", f"v_and_b32 v{Z[s]+47}, 0xffff0000, v{r}"]
    return out

def gen(opt):
    TRACE[0] = False
    st = (lambda i: stamp(i)) if opt.get("stamps") else (lambda i: [])
    ldm = opt.get("ldmod", "nt")
    L = ["s_cmp_ge_u32 s2, 252", "s_cbranch_scc1 L_end",
         "s_load_dwordx8 s[4:11], s[0:1], 0", "s_load_dwordx4 s[12:15], s[0:1], 32"]
    if opt.get("stamps") or opt.get("dump"): L += ["s_load_dwordx2 s[16:17], s[0:1], 56"]
    L += st(0)
    L += [f"v_lshrrev_b32 v{vT0}, 6, v0", f"v_and_b32 v{vLANE}, 63, v0"]
    L += tile_decode()
    L += [f"v_readfirstlane_b32 s{sW}, v{vT0}"]
    tA, tB, tC = POOL+20, POOL+21, POOL+22
    L += [f"v_mul_u32_u24 v{tA}, 43, v{vLANE}", f"v_lshrrev_b32 v{tA}, 9, v{tA}",
          f"v_mul_u32_u24 v{tB}, 12, v{tA}", f"v_sub_u32 v{tB}, v{vLANE}, v{tB}", f"v_lshlrev_b32 v{tB}, 2, v{tB}",
          f"s_mul_i32 s{sT0}, s{sW}, 48",
          f"v_mul_u32_u24 v{vT0}, 384, v{tA}", f"v_add3_u32 v{vT0}, v{vT0}, v{tB}, s{sT0}",
          f"v_mov_b32 v{vC[0]}, {BIG}",
          f"v_cmp_gt_u32 vcc, 5, v{tA}", f"v_subrev_u32 v{vT1}, 384, v{vT0}", f"v_subrev_u32 v{vC[1]}, 1, v{tA}",
          f"v_cndmask_b32 v{vT0}, v{vC[0]}, v{vT0}, vcc",
          f"v_cmp_gt_u32 vcc, 3, v{vC[1]}",
          f"s_bfe_u32 s{sPa}, s{sW}, 0x10001", f"s_and_b32 s{sHb}, s{sW}, 1",
          f"v_cndmask_b32 v{vT1}, v{vC[0]}, v{vT1}, vcc"]
    L += [f"v_lshrrev_b32 v{vC[1]}, 4, v0",
          f"v_mul_u32_u24 v{vC[2]}, 43, v{vC[1]}", f"v_lshrrev_b32 v{vC[2]}, 7, v{vC[2]}",
          f"v_mul_u32_u24 v{vC[3]}, 3, v{vC[2]}", f"v_sub_u32 v{vC[1]}, v{vC[1]}, v{vC[3]}",
          f"v_and_b32 v{vC[3]}, 7, v0", f"v_lshl_add_u32 v{vC[1]}, v{vC[1]}, 3, v{vC[3]}",
          f"v_bfe_u32 v{vC[3]}, v0, 3, 1", f"v_lshl_add_u32 v{vC[2]}, v{vC[2]}, 1, v{vC[3]}",
          f"s_sub_u32 s{sT1}, s{sC0}, 2",
          f"v_add_u32 v{vC[3]}, s{sT1}, v{vC[2]}",
          f"v_mul_u32_u24 v{vXL}, 384, v{vC[3]}", f"v_lshl_add_u32 v{vXL}, v{vC[1]}, 4, v{vXL}",
          f"v_cmp_gt_u32 vcc, 224, v{vC[3]}",
          "s_waitcnt lgkmcnt(0)",
          f"v_cndmask_b32 v{vXL}, v{vC[0]}, v{vXL}, vcc",
          f"v_cmp_gt_u32 vcc, 480, v0"]
    L += srd(SRD_DS, 8, 9600) + srd(SRD_DL, 6, 3456) + srd(SRD_X, 4, XBYTES)
    L += [f"v_cndmask_b32 v{vXL}, v{vC[0]}, v{vXL}, vcc"]
    DS_, DL_ = POOL, POOL+5
    L += [f"s_mov_b32 s{sT1}, 5760"]
    for ti in range(5):
        so, o = ("0", ti*1920) if ti < 3 else (f"s{sT1}", (ti-3)*1920)
        L.append(f"buffer_load_dword v{DS_+ti}, v{vT0}, s[{SRD_DS}:{SRD_DS+3}], {so} offen offset:{o}")
    for ti in range(3):
        L.append(f"buffer_load_dword v{DL_+ti}, v{vT1}, s[{SRD_DL}:{SRD_DL+3}], 0 offen offset:{ti*1152}")
    L += [f"s_sub_u32 s{sROW}, s{sR0}, 2"]
    for r in range(17):
        if r in (0, 1, 2, 15, 16):
            L += [f"s_mul_i32 s{sT0}, s{sROW}, 86016", f"s_cmp_lt_u32 s{sROW}, 224",
                  f"s_cselect_b32 s{sT0}, s{sT0}, 0", f"s_cselect_b32 s{SRD_X+2}, {XBYTES}, 0"]
            if r == 0: L += [f"s_cmp_eq_u32 s{sH13}, 1", f"s_cselect_b32 s{SRD_X+2}, s{SRD_X+2}, 0"]
        else:
            L += [f"s_mul_i32 s{sT0}, s{sROW}, 86016"]
            if r == 3: L += [f"s_mov_b32 s{SRD_X+2}, {XBYTES}"]
        L += [f"buffer_load_dwordx4 {vr(STG[r],4)}, v{vXL}, s[{SRD_X}:{SRD_X+3}], s{sT0} offen {ldm}",
              f"s_add_u32 s{sROW}, s{sROW}, 1"]
        if r == opt.get("cpf_at", 4) and opt.get("cpf", 1):
            L += code_prefetch(32768, vtmp=f"v{vPART}", vdst=f"v{Z[1]}", srdreg=SRD_PC)
            L[-3:-2] = [f"v_lshlrev_b32 v{POOL+31}, 6, v0"]
            L[-1] = L[-1].replace(f"v{vPART},", f"v{POOL+31},")
    ncpf = 1 if opt.get("cpf", 1) else 0
    L += st(1)
    L += [f"v_mul_u32_u24 v{vXW}, {OP}, v{vC[1]}", f"v_lshl_add_u32 v{vXW}, v{vC[2]}, 3, v{vXW}",
          f"v_mul_u32_u24 v{POOL+32}, {OP0}, v{vC[1]}", f"v_lshl_add_u32 v{POOL+32}, v{vC[2]}, 3, v{POOL+32}",
          f"v_add_u32 v{POOL+32}, {B0}, v{POOL+32}",
          f"v_mov_b32 v{vC[0]}, {LDSOOB}",
          f"v_cndmask_b32 v{vXW}, v{vC[0]}, v{vXW}, vcc", f"v_cndmask_b32 v{POOL+32}, v{vC[0]}, v{POOL+32}, vcc"]
    L += srd(SRD_W1, 10, 294912) + srd(SRD_W2, 12, 294912) + srd(SRD_OUT, 14, XBYTES)
    mode = opt["gelu"]
    L += [f"s_mov_b32 s{sK}, {hex(f16pk(KC) if mode=='f16' else f32bits(KC))}", f"s_mov_b32 s{sS}, {hex(f16pk(SC) if mode=='f16' else f32bits(SC))}"]
    L += [f"s_mul_i32 s{sT0}, s{sW}, {TW}", f"s_add_u32 s{sT0}, s{sT0}, {TB}",
          f"v_mul_u32_u24 v{tC}, 96, v{tA}", f"v_lshl_add_u32 v{tC}, v{tB}, 1, v{tC}", f"v_add_u32 v{tC}, s{sT0}, v{tC}",
          f"v_mul_u32_u24 v{tA}, 576, v{tA}", f"v_lshl_add_u32 v{tA}, v{tB}, 1, v{tA}", f"v_add_u32 v{tA}, s{sT0}, v{tA}",
          f"v_mov_b32 v{vT0}, 0", f"v_mov_b32 v{vT1}, 0",
          f"ds_write_b64 v{tA}, v[{vT0}:{vT1}] offset:480"]
    GA = [POOL+24+i for i in range(6)]
    o_, c_, q_ = vC[1], vC[2], vC[3]
    L += [f"v_bfe_u32 v{o_}, v{vLANE}, 2, 2", f"v_and_b32 v{c_}, 3, v{vLANE}", f"v_lshrrev_b32 v{q_}, 4, v{vLANE}",
          f"v_mul_u32_u24 v{vIDX}, 0x5555, v{c_}",
          f"v_lshl_add_u32 v{c_}, v{c_}, 2, s{sT0}",
          f"v_lshrrev_b32 v{vT0}, 1, v{q_}", f"v_mul_u32_u24 v{vT0}, 576, v{vT0}", f"v_add_u32 v{vT0}, v{vT0}, v{c_}",
          f"v_and_b32 v{vT1}, 1, v{q_}", f"v_lshlrev_b32 v{vT1}, 2, v{vT1}", f"v_sub_u32 v{vT1}, v{vT1}, v{o_}"]
    for jj in range(4):
        L += [f"v_add_u32 v{GA[jj]}, {jj}, v{vT1}", f"v_min_u32 v{GA[jj]}, 5, v{GA[jj]}",
              f"v_mad_u32_u24 v{GA[jj]}, v{GA[jj]}, s{sT2}, v{vT0}"]
    L.insert(len(L)-12, f"s_mov_b32 s{sT2}, 96")
    L += [f"v_lshlrev_b32 v{vT1}, 1, v{q_}", f"v_sub_u32 v{vT1}, v{vT1}, v{o_}", f"v_add_u32 v{c_}, {4*576}, v{c_}"]
    for jj in range(2):
        L += [f"v_add_u32 v{GA[4+jj]}, {jj}, v{vT1}", f"v_min_u32 v{GA[4+jj]}, 5, v{GA[4+jj]}",
              f"v_mad_u32_u24 v{GA[4+jj]}, v{GA[4+jj]}, s{sT2}, v{c_}"]
    L += [f"s_mov_b32 s{sT1}, 0x05040100", f"s_mov_b32 s{sT2}, 0x07060302",
          f"s_waitcnt vmcnt({17+ncpf})"]
    PK = POOL+8
    for ti in range(5):
        if 1 <= ti <= 3:
            L += [f"v_perm_b32 v{PK+2*ti}, v{DL_+ti-1}, v{DS_+ti}, s{sT1}", f"v_perm_b32 v{PK+2*ti+1}, v{DL_+ti-1}, v{DS_+ti}, s{sT2}"]
        else:
            L += [f"v_and_b32 v{PK+2*ti}, 0xffff, v{DS_+ti}", f"v_lshrrev_b32 v{PK+2*ti+1}, 16, v{DS_+ti}"]
        L.append(f"ds_write_b64 v{tC}, {vr(PK+2*ti,2)} offset:{576*ti}")
    L += ["s_waitcnt lgkmcnt(0)"]
    n = 0
    for g in range(6):
        for f in range(2):
            for jj in range(4):
                L.append(f"ds_read_b32 v{A0+10*g+4*f+jj}, v{GA[jj]} offset:{f*1152 + g*16}")
        for jj in range(2):
            L.append(f"ds_read_b32 v{A0+10*g+8+jj}, v{GA[4+jj]} offset:{g*16}")
    L += [f"v_lshlrev_b32 v{vPART}, 3, v{vLANE}", f"v_add_u32 v{vPART}, {PART}, v{vPART}",
          f"v_bfe_u32 v{vT0}, v{vLANE}, 2, 2", f"v_lshrrev_b32 v{vT1}, 4, v{vLANE}",
          f"v_lshl_add_u32 v{vXS}, v{vT0}, 2, v{vT1}", f"v_lshlrev_b32 v{vXS}, 4, v{vXS}",
          f"v_lshlrev_b32 v{vT0}, 1, v{vT0}", f"v_add_u32 v{vT0}, v{vT0}, v{vT1}", f"v_lshlrev_b32 v{vT0}, 4, v{vT0}",
          f"s_mul_i32 s{sT0}, s{sW}, {3*OP0}", f"s_add_u32 s{sT0}, s{sT0}, {B0}", f"v_add_u32 v{vC[0]}, s{sT0}, v{vT0}",
          f"s_mul_i32 s{sT0}, s{sW}, {3*OP}", f"v_add_u32 v{vC[1]}, s{sT0}, v{vT0}",
          f"s_mul_i32 s{sT0}, s{sW}, 768", f"v_add_u32 v{vXS}, s{sT0}, v{vXS}"]
    L += q_dma_setup(lane=f"v{vLANE}", t0=f"v{vT0}", t1=f"v{vT1}")[:10]
    L += [f"s_waitcnt vmcnt({12+ncpf if opt.get('cpf_at',4) > 4 else 12})"] if False else [f"s_waitcnt vmcnt({12 + (ncpf if opt.get('cpf_at',4) >= 4 else 0)})"]
    L += xwrite([(0, 0)], POOL+32) + xwrite([(i, 1+i) for i in range(4)], vXW)
    L += ["s_waitcnt lgkmcnt(0)", "s_barrier"]
    L += st(2)
    L += [f"s_cmp_eq_u32 s{sH13}, 0", "s_cbranch_scc1 L_noL1"]
    L += only('Q', q_resid_l()) + conv('L') + ["s_waitcnt lgkmcnt(0)", "L_noL1:", "s_barrier"]
    L += [f"s_lshr_b32 s{sT0}, s{sW}, 2", f"s_mul_i32 s{sT1}, s{sT0}, 12288", f"s_add_u32 s{sT1}, s{sT1}, s{sM1}",
          f"s_lshl_b32 s{sT0}, s{sT0}, 6", f"s_add_u32 s{sT0}, s{sT0}, s{sD1}"]
    for i in range(3):
        L += [f"s_add_u32 m0, s{sT1}, {W1S[0] + i*1024}", f"s_add_u32 s69, s{sT0}, {i*16*1536}",
              f"buffer_load_dwordx4 v{vD1}, s[{SRD_W1}:{SRD_W1+3}], s69 offen lds"]
    L += [f"s_cmp_eq_u32 s{sH13}, 0", "s_cbranch_scc1 L_noL2",
          f"v_and_b32 v{POOL+30}, 3, v{vLANE}", f"v_cmp_eq_u32 vcc, 0, v{POOL+30}", f"v_mov_b32 v{POOL+31}, v{vXS}",
          f"v_mov_b32 v{POOL+30}, {LDSOOB}", f"v_add_u32 v{vXS}, {XLO}, v{vXS}", f"v_cndmask_b32 v{vXS}, v{POOL+30}, v{vXS}, vcc"]
    L += layernorm(0) + [f"v_mov_b32 v{vXS}, v{POOL+31}", "L_noL2:"]
    L += [f"v_and_b32 v{vT0}, 3, v{vLANE}", f"v_mul_u32_u24 v{vT1}, {XRP}, v{vT0}", f"v_add_u32 v{vXS}, v{vXS}, v{vT1}",
          f"v_mov_b32 v{POOL+30}, v{vC[1]}"]
    for rho in range(4):
        L += [f"v_add_u32 v{vT1}, {rho}, v{vT0}", f"v_lshrrev_b32 v{POOL+31}, 2, v{vT1}",
              f"v_mul_u32_u24 v{POOL+31}, {BS-1280}, v{POOL+31}", f"v_mul_u32_u24 v{vT1}, 320, v{vT1}",
              f"v_add3_u32 v{vC[rho]}, v{POOL+30}, v{vT1}, v{POOL+31}"]
    for s in range(3):
        L += [f"v_add_u32 v{vXW}, {BS}, v{vXW}", f"s_waitcnt vmcnt({8-4*s+3})"]
        L += xwrite([(i, 5+4*s+i) for i in range(4)], vXW)
        L += ["s_waitcnt lgkmcnt(0)", "s_barrier"]
        L += st(3+s)
        if s >= 1: L += only('P', p_xread(s-1) + ["s_waitcnt lgkmcnt(0)"])
        L += only('Q', q_resid(s) + ["s_waitcnt lgkmcnt(0)"])
        L += conv('S')
        if s < 2: L += [f"v_add_u32 v{r}, {BS}, v{r}" for r in vC]
        L += ["s_waitcnt lgkmcnt(0)", "s_barrier"]
        if s == 2:
            L += only('Q', [f"s_and_b32 s26, s{sW}, 3"] + q_dma_setup(lane=f"v{vLANE}", t0=f"v{POOL+30}", t1=f"v{POOL+31}")[10:] + dma_one(2, 0, 0) + dma_one(1, 2, 2) + dma_one(2, 1, 1))
        L += layernorm(XST[s])
    L += [f"s_cmp_ge_u32 s{sW}, 4", "s_cbranch_scc1 L_Q"]
    L += ["s_waitcnt vmcnt(0) lgkmcnt(0)", "s_barrier"]
    L += st(6)
    L += p_xread(2)
    L[-14:-12] = [f"s_mul_i32 s{sT0}, s{sPa}, {2*XRP}", f"v_lshl_add_u32 v{vT0}, v{vLANE}, 4, s{sT0}"]
    L[-12:] = [x.replace(f"v{POOL+36} ", f"v{vT0} ") for x in L[-12:]]
    L += [f"v_lshlrev_b32 v{vT1}, 4, v{vLANE}", f"v_add_u32 v{vT1}, {XLO}, v{vT1}"]
    L += [f"ds_read_b128 {vr(P_XL+4*k,4)}, v{vT1} offset:{1024*k}" for k in range(6)]
    if opt.get("dump"):
        L += ["s_waitcnt lgkmcnt(0)"] + srd(SRD_WS, 16, 1 << 26)
        L += ["s_lshl_b32 s26, s2, 2", f"s_add_u32 s26, s26, s{sW}", "s_mul_i32 s26, s26, 43008", f"v_lshlrev_b32 v4, 4, v{vLANE}"]
        for t in range(7):
            for k in range(6):
                r = xreg(t, k) if t < 6 else P_XL+4*k
                L += [f"buffer_store_dwordx4 {vr(r,4)}, v4, s[{SRD_WS}:{SRD_WS+3}], s26 offen", "s_add_u32 s26, s26, 1024"]
        L += ["s_waitcnt vmcnt(0)"]
    L += p_addr_setup(lane=f"v{vLANE}", t0="v4", t1="v5")
    L += p_main(opt)
    if opt.get("stamps"): L += srd(SRD_WS, 16, 1 << 24) + stamp_out(7)
    L += ["s_endpgm"]
    L += ["L_Q:", "s_waitcnt vmcnt(9) lgkmcnt(0)", "s_barrier"]
    L += st(6)
    L += q_addr_setup(lane=f"v{vLANE}")
    L += [f"s_add_u32 s{sD1}, s{sD1}, {3*64}", f"s_add_u32 s{sD2}, s{sD2}, {2*12288}"]
    L += q_unpack()
    L += ["s_waitcnt vmcnt(6)", "s_barrier"]
    L += st(2)
    L += q_main(opt, [])
    L += st(3)
    L += q_epilogue(opt)
    if opt.get("stamps"): L += ["s_waitcnt vmcnt(0)"] + st(4) + srd(SRD_WS, 16, 1 << 24) + stamp_out(7)
    L += ["L_end:", "s_endpgm"]
    return render(L, opt)

DEF = dict(gelu="f16", has_l=True, nlate=2, prio_hi=0, prio_lo=0, prio_q=0, lead=23)
if __name__ == "__main__":
    src = gen(dict(DEF))
    open("standalone__modern_conv_block_replknet__vision.s", "w").write(src)
```
